```python
import torch

def _softmax(x, axis=-1):
    return torch.softmax(x, dim=axis)
def _gelu(x):
    return torch.nn.functional.gelu(x, approximate="tanh")
def _silu(x):
    return torch.nn.functional.silu(x)
def _sigmoid(x):
    return torch.sigmoid(x)
def _layernorm(x, axis=-1, eps=1e-5):
    m = x.mean(dim=axis, keepdim=True)
    v = x.var(dim=axis, keepdim=True, unbiased=False)
    return (x - m) / torch.sqrt(v + eps)
def _scatter_add(tgt, idx, src, axis=0):
    return tgt.clone().index_add_(axis, idx, src)
def _segment_sum(src, seg, n):
    out = torch.zeros((n,) + src.shape[1:], dtype=src.dtype)
    return out.index_add_(0, seg, src)
def _pad(x, pw):
    flat = tuple(v for pair in reversed(pw) for v in pair)
    return torch.nn.functional.pad(x, flat)

kernel_name = 'interleave_layers__mha_block_cached__glu_gated_geglu__decode'

def setup_inputs():

    _w = (lambda a: (lambda t: t.to(torch.bfloat16) if t.is_floating_point() else t)(torch.as_tensor(a)))
    def _A_setup():
        B, Sq, D = 2, 1, 512
        H, Sk, Dh = 32, 8192, 128
        return {
            "x": _w((lambda *s: torch.randn(*s, dtype=torch.bfloat16) * 0.05)(B, Sq, D)),
            "k_cache": _w((lambda *s: torch.randn(*s, dtype=torch.bfloat16) * 0.8)(B, H, Sk, Dh)),
            "v_cache": _w((lambda *s: torch.randn(*s, dtype=torch.bfloat16) * 1.6)(B, H, Sk, Dh)),
            "wq": _w((lambda *s: torch.randn(*s, dtype=torch.bfloat16) * 0.8)(D, H * Dh) * (D ** -0.5)),
            "wo": _w((lambda *s: torch.randn(*s, dtype=torch.bfloat16) * 1.6)(H * Dh, D) * ((H * Dh) ** -0.5)),
        }
    _A_in = _A_setup()

    def _B_setup():
        B, S, Dm, Df = 2, 1, 512, 1792
        return {
            "x": _w((lambda *s: torch.randn(*s, dtype=torch.bfloat16) * 0.05)(B, S, Dm)),
            "w_gate": _w((lambda *s: torch.randn(*s, dtype=torch.bfloat16) * 0.4)(Dm, Df) * (Dm ** -0.5)),
            "w_up": _w((lambda *s: torch.randn(*s, dtype=torch.bfloat16) * 0.4)(Dm, Df) * (Dm ** -0.5)),
            "w_down": _w((lambda *s: torch.randn(*s, dtype=torch.bfloat16) * 0.4)(Df, Dm) * (Df ** -0.5)),
        }
    _B_in = _B_setup()

    return {
        "A_x": _A_in["x"],
        "A_k_cache": _A_in["k_cache"],
        "A_v_cache": _A_in["v_cache"],
        "A_wq": _A_in["wq"],
        "A_wo": _A_in["wo"],
        "B_x": _B_in["x"],
        "B_w_gate": _B_in["w_gate"],
        "B_w_up": _B_in["w_up"],
        "B_w_down": _B_in["w_down"],
    }

def reference(A_x, A_k_cache, A_v_cache, A_wq, A_wo, B_x, B_w_gate, B_w_up, B_w_down):
    def _A_ref(x, k_cache, v_cache, wq, wo):
        B, Sq, D = x.shape
        H, Dh = 32, 128
        q = (lambda x, *d: x.permute(*d))((x @ wq).reshape(B, Sq, H, Dh), 0, 2, 1, 3)
        scores = torch.einsum("bhqd,bhkd->bhqk", q, k_cache) * (Dh ** -0.5)
        p = _softmax(scores, axis=-1)
        o = torch.einsum("bhqk,bhkd->bhqd", p, v_cache)
        return (lambda x, *d: x.permute(*d))(o, 0, 2, 1, 3).reshape(B, Sq, H * Dh) @ wo

    def _B_ref(x, w_gate, w_up, w_down):
        g = torch.einsum("bsd,df->bsf", x, w_gate)
        u = torch.einsum("bsd,df->bsf", x, w_up)
        h = _gelu(g) * u
        return torch.einsum("bsf,fd->bsd", h, w_down)

    x = A_x
    x = x + _A_ref(_layernorm(x, axis=-1), A_k_cache, A_v_cache, A_wq, A_wo)
    x = x + _B_ref(_layernorm(x, axis=-1), B_w_gate, B_w_up, B_w_down)
    x = x + _A_ref(_layernorm(x, axis=-1), A_k_cache, A_v_cache, A_wq, A_wo)
    x = x + _B_ref(_layernorm(x, axis=-1), B_w_gate, B_w_up, B_w_down)
    return x
```

```python
import re

TRANS = ("v_exp_f32", "v_log_f32", "v_rcp_f32", "v_rsq_f32", "v_sqrt_f32", "v_sin_f32", "v_cos_f32")
_reg = re.compile(r"^(-|abs\()?([vas])(\d+)\)?$")
_rng = re.compile(r"^(-|abs\()?([vas])\[(\d+):(\d+)\]\)?$")


def regs_of(tok):
    tok = tok.strip()
    m = _reg.match(tok)
    if m:
        return {(m.group(2), int(m.group(3)))}
    m = _rng.match(tok)
    if m:
        return {(m.group(2), i) for i in range(int(m.group(3)), int(m.group(4)) + 1)}
    if tok == "vcc":
        return {("s", "vcc")}
    if tok == "exec":
        return {("s", "exec")}
    if tok == "m0":
        return {("s", "m0")}
    return set()


def split_ops(s):
    out, depth, cur = [], 0, ""
    for ch in s:
        if ch == "[":
            depth += 1
        elif ch == "]":
            depth -= 1
        if ch == "," and depth == 0:
            out.append(cur.strip()); cur = ""
        else:
            cur += ch
    if cur.strip():
        out.append(cur.strip())
    mods = ""
    if out:
        parts = out[-1].split(None, 1)
        out[-1] = parts[0]
        if len(parts) > 1:
            mods = parts[1]
    return out, mods


class Ins:
    __slots__ = ("text", "mn", "kind", "w", "r", "slots", "dpp", "A", "B", "C", "D", "sread", "swrite",
                 "wide_data", "trans", "lanesel", "ldsdma", "perm", "rdlane", "opsel")

    def __init__(self, text):
        self.text = text
        p = text.split(None, 1)
        self.mn = mn = p[0]
        ops, mods = split_ops(p[1]) if len(p) > 1 else ([], "")
        R = [regs_of(o) for o in ops]
        vec = lambda s: {x for x in s if x[0] in "va"}
        sc = lambda s: {x for x in s if x[0] == "s"}
        uni = lambda L: set().union(*L) if L else set()
        self.slots = 1
        self.w = set(); self.r = set(); self.sread = set(); self.swrite = set()
        self.dpp = False; self.A = self.B = self.C = self.D = set(); self.wide_data = set()
        self.trans = False; self.lanesel = set(); self.ldsdma = False; self.perm = False; self.rdlane = False
        self.opsel = False
        if mn == "s_nop":
            self.kind = "nop"; self.slots = int(ops[0], 0) + 1
        elif mn.startswith("v_mfma"):
            self.kind = "mfma"
            self.D, self.A, self.B, self.C = R[0], R[1], R[2], R[3]
            self.w = set(R[0]); self.r = R[1] | R[2] | R[3]
        elif mn.startswith("v_"):
            self.kind = "valu"
            self.dpp = mn.endswith("_dpp") or any(k in mods for k in ("quad_perm", "row_", "wave_"))
            base = mn.replace("_dpp", "").replace("_e32", "").replace("_e64", "")
            self.trans = base in TRANS
            self.opsel = "op_sel" in mods or "sdwa" in mn
            if base.startswith("v_cmp"):
                self.swrite = sc(R[0]); self.r = vec(uni(R[1:])); self.sread = sc(uni(R[1:]))
                if base.startswith("v_cmpx"):
                    self.swrite = self.swrite | {("s", "exec")}
            elif base in ("v_readlane_b32", "v_readfirstlane_b32"):
                self.swrite = sc(R[0]); self.r = vec(R[1]); self.rdlane = True
                if len(R) > 2: self.lanesel = sc(R[2])
            elif base.startswith("v_permlane") and base.endswith("swap_b32"):
                self.w = R[0] | R[1]; self.r = R[0] | R[1]; self.perm = True
            elif base in ("v_add_co_u32", "v_sub_co_u32", "v_addc_co_u32"):
                self.w = vec(R[0]); self.swrite = sc(R[1]); self.r = vec(uni(R[2:])); self.sread = sc(uni(R[2:]))
            else:
                self.w = vec(R[0]); self.r = vec(uni(R[1:])); self.sread = sc(uni(R[1:]))
                if base.startswith("v_fmac") or base.startswith("v_dot2c") or self.dpp or base == "v_writelane_b32":
                    self.r = self.r | self.w
        elif mn.startswith("buffer_") or mn.startswith("global_"):
            self.kind = "vmem"
            lds = re.search(r"\blds\b", mods) is not None
            if "load" in mn:
                if lds:
                    self.ldsdma = True; self.r = vec(uni(R)); self.sread = sc(uni(R))
                else:
                    self.w = vec(R[0]); self.r = vec(uni(R[1:])); self.sread = sc(uni(R[1:]))
            else:
                self.r = vec(uni(R)); self.sread = sc(uni(R))
                if mn.endswith("x4") or mn.endswith("x3"):
                    self.wide_data = vec(R[0] if mn.startswith("buffer_") else R[1])
        elif mn.startswith("ds_"):
            self.kind = "ds"
            if "read" in mn or "permute" in mn or "swizzle" in mn:
                self.w = vec(R[0]); self.r = vec(uni(R[1:]))
            else:
                self.r = vec(uni(R))
        else:
            self.kind = "salu"
            if mn.startswith("s_cmp") or mn.startswith("s_cbranch") or mn in ("s_branch", "s_waitcnt", "s_barrier", "s_sleep", "s_endpgm", "s_setprio"):
                pass
            elif R:
                self.swrite = sc(R[0])


def need(p, c):
    n = 0
    if p.kind == "valu":
        if p.w:
            if c.kind == "valu":
                if c.dpp and (p.w & c.r): n = max(n, 2)
                if c.perm and (p.w & c.r): n = max(n, 2)
                if c.rdlane and (p.w & c.r): n = max(n, 1)
                if p.trans and not c.trans and (p.w & c.r): n = max(n, 1)
                if p.opsel and (p.w & (c.r | c.w)): n = max(n, 1)
            if c.kind == "mfma" and (p.w & c.r): n = max(n, 2)
        if p.swrite:
            if c.kind == "valu":
                if p.swrite & c.sread: n = max(n, 2)
                if p.swrite & c.lanesel: n = max(n, 4)
                if ("s", "exec") in p.swrite:
                    if c.dpp: n = max(n, 5)
                    if c.rdlane or c.perm: n = max(n, 4)
            if c.kind == "vmem" and (p.swrite & c.sread): n = max(n, 5)
            if c.kind == "mfma" and ("s", "exec") in p.swrite: n = max(n, 4)
    elif p.kind == "mfma":
        big = "32x32" in p.mn
        d_rw = 12 if big else 8
        if c.kind == "mfma":
            if p.D & (c.A | c.B): n = max(n, d_rw)
            if p.D & c.C and p.D != c.C: n = max(n, 10 if big else 6)
            if p.D & c.D and p.D != c.C: n = max(n, d_rw)
        elif c.kind in ("valu", "vmem", "ds"):
            if p.D & (c.r | c.w): n = max(n, d_rw)
            if c.kind == "valu" and (p.C & c.w): n = max(n, 7 if big else 3)
    elif p.kind == "vmem":
        if p.wide_data and (p.wide_data & c.w):
            n = max(n, 2 if c.kind in ("valu", "mfma") else 1)
    elif p.kind == "salu":
        if ("s", "m0") in p.swrite and c.ldsdma: n = max(n, 1)
    return n


class Asm:
    def __init__(self):
        self.lines = []
        self.hist = []
        self.vm = []
        self.lg = []
        self.nnop = 0
        self.uid = 0

    def raw(self, t):
        self.lines.append(t)

    def comment(self, t):
        self.lines.append("; " + t)

    def _pad(self, n):
        while n > 0:
            k = min(n, 16)
            t = f"s_nop {k-1}"
            self.lines.append("  " + t); self.hist.append(Ins(t)); self.nnop += k
            n -= k

    def __call__(self, text, tag=None, count=True):
        c = Ins(text)
        dist = 0; req = 0
        for p in reversed(self.hist):
            req = max(req, need(p, c) - dist)
            dist += p.slots
            if dist >= 20: break
        if req > 0: self._pad(req)
        isbr = c.mn.startswith("s_cbranch") or c.mn in ("s_branch", "s_setpc_b64", "s_call_b64")
        if isbr: self.settle(1)
        self.lines.append("  " + text)
        self.hist.append(c)
        if len(self.hist) > 40: self.hist = self.hist[-24:]
        if c.kind == "vmem" and count: self.vm.append(tag)
        if c.kind == "ds": self.lg.append(tag)
        return c

    def settle(self, credit=0):
        dist = credit; req = 0
        for p in reversed(self.hist):
            w = 0
            if p.kind == "mfma": w = 12 if "32x32" in p.mn else 8
            elif p.kind == "valu":
                w = 2 if p.w else 0
                if p.swrite - {("s", "vcc")}: w = 5
                elif p.swrite: w = max(w, 2)
            elif p.kind == "vmem" and p.wide_data: w = 2
            elif p.kind == "salu" and ("s", "m0") in p.swrite: w = 1
            req = max(req, w - dist)
            dist += p.slots
            if dist >= 20: break
        if req > 0: self._pad(req)

    def label(self, name):
        self.settle()
        self.lines.append(name + ":")
        self.hist = []

    def skip_begin(self, br, label):
        c = Ins(f"{br} {label}")
        self.lines.append("  " + c.text)
        self.hist.append(c)
        return list(self.hist)

    def skip_end(self, label, saved, keep_block=False):
        if keep_block:
            self.lines.append(label + ":")
            return
        h = self.hist
        k = len(h)
        while k > 0 and h[k - 1] is not saved[-1]: k -= 1
        self.hist = h[k:]
        self.settle()
        self.lines.append(label + ":")
        self.hist = saved

    def newlabel(self, base):
        self.uid += 1
        return f"L_{base}_{self.uid}"

    def wait_vm(self, tag=None, n=None):
        if n is None:
            if tag is None: n = 0
            else:
                idx = [i for i, t in enumerate(self.vm) if t == tag]
                if not idx: return
                n = len(self.vm) - 1 - idx[-1]
        if n >= len(self.vm) and tag is not None: return
        assert n <= 63
        self(f"s_waitcnt vmcnt({n})")
        if n < len(self.vm): self.vm = self.vm[len(self.vm) - n:] if n else []

    def throttle(self, depth):
        if len(self.vm) > depth - 1:
            self.wait_vm(n=depth - 1)

    def wait_lg(self, tag=None):
        if tag is None: n = 0
        else:
            idx = [i for i, t in enumerate(self.lg) if t == tag]
            if not idx: return
            n = len(self.lg) - 1 - idx[-1]
        n = min(n, 15)
        self(f"s_waitcnt lgkmcnt({n})")
        self.lg = self.lg[len(self.lg) - n:] if n else []

    def text(self):
        return "\n".join(self.lines) + "\n"
```

```python
import sys, math, struct
sys.path.insert(0, "tools")
from asmgen import Asm

NAME = "interleave_layers__mha_block_cached__glu_gated_geglu__decode"
KN = NAME + "_kernel"

PART = 0x100000
YOFF = 0x600000
QOFF = 0x700000
WSREC = 0x800000
OOB = 0x40000000

SK, SV, SW, SD = "s[8:11]", "s[12:15]", "s[16:19]", "s[20:23]"
SX, SWQ, SWO, SWG, SWU, SWD, SO = "s[24:27]", "s[28:31]", "s[32:35]", "s[36:39]", "s[40:43]", "s[44:47]", "s[48:51]"
DPPALL = "row_mask:0xf bank_mask:0xf"


def f2u(x):
    return struct.unpack("<I", struct.pack("<f", x))[0]


def vr(b, n=4, f="v"):
    return f"{f}[{b}:{b+n-1}]" if n > 1 else f"{f}{b}"


def ror(k, bank=0xf):
    k %= 16
    return (f"row_ror:{k}" if k else "quad_perm:[0,1,2,3]") + f" row_mask:0xf bank_mask:{bank:#x}"


class Cfg:
    XK = 6
    L0 = 8
    T = 16
    ST = 48
    nt = "nt"
    wnt = "nt"
    stamps = False
    flag_at = 8
    spin = 20000
    sl_q = 2
    sl_r = 1
    sl_y = 1
    pre_y = 0


def gen(cfg, path):
    a = Asm()
    XK, L0 = cfg.XK, cfg.L0
    assert 2 <= XK and XK + 2 <= L0 <= 12
    ldsu = list(range(L0, L0 + 4))
    pre = list(range(0, L0))
    post = list(range(L0 + 4, 18))
    regu = pre + post

    def slot(u):
        i = regu.index(u)
        return ("a", 32 * i) if i < 8 else ("v", 64 + 32 * (i - 8))

    def kreg(u, t):
        f, b = slot(u); return vr(b + 4 * t, 4, f)

    def vreg(u, t):
        f, b = slot(u); return vr(b + 16 + 4 * t, 4, f)

    def stamp():
        if not cfg.stamps: return
        a("s_memrealtime s[90:91]")
        a("s_waitcnt lgkmcnt(0)"); a.lg = []
        a("s_mov_b64 s[94:95], exec")
        a("s_mov_b64 exec, 1")
        a(f"v_mov_b32 v{STMP}, s90"); a(f"v_mov_b32 v{STMP+1}, s91")
        a(f"buffer_store_dwordx2 {vr(STMP,2)}, off, {SW}, s92", count=False)
        a("s_add_u32 s92, s92, 8")
        a("s_mov_b64 exec, s[94:95]")
        a("s_nop 1")

    a.raw("; @launch grid=(256,1,1) block=(256,1,1) lds=163840")
    a.raw('.amdgcn_target "amdgcn-amd-amdhsa--gfx950"')
    a.raw(".text"); a.raw(f".globl {KN}"); a.raw(".p2align 8"); a.raw(f".type {KN},@function"); a.raw(f"{KN}:")
    a("s_cmp_ge_u32 s2, 256"); a("s_cbranch_scc1 L_end")
    a("s_load_dwordx16 s[64:79], s[0:1], 0")
    a("s_load_dwordx8 s[80:87], s[0:1], 64")
    a("v_lshrrev_b32 v1, 6, v0"); a("v_and_b32 v0, 63, v0")
    a("v_readfirstlane_b32 s3, v1")
    a("v_lshlrev_b32 v2, 4, v0")
    a("v_and_b32 v1, 3, v0"); a("v_lshlrev_b32 v1, 4, v1")
    a("v_bfe_u32 v3, v0, 2, 2"); a("v_lshl_add_u32 v1, v3, 8, v1")
    a("v_lshrrev_b32 v4, 4, v0"); a("v_lshl_add_u32 v1, v4, 6, v1")
    for t in range(4):
        a(f"s_mov_b32 s{52+2*t}, {0x11111111 << t:#x}"); a(f"s_mov_b32 s{53+2*t}, {0x11111111 << t:#x}")
    a(f"s_mov_b32 s60, {f2u(128 ** -0.5 * math.log2(math.e)):#x}")
    a("s_waitcnt lgkmcnt(0)")

    def srd(base, p, nrec):
        a(f"s_mov_b32 s{base}, s{p}"); a(f"s_mov_b32 s{base+1}, s{p+1}")
        a(f"s_mov_b32 s{base+2}, {nrec:#x}"); a(f"s_mov_b32 s{base+3}, 0x20000")
    srd(8, 66, 0x8000000); srd(12, 68, 0x8000000); srd(16, 86, WSREC); srd(20, 84, 256)
    if cfg.stamps:
        a("s_lshl_b32 s92, s2, 2"); a("s_add_u32 s92, s92, s3"); a("s_lshl_b32 s92, s92, 8")
    a("s_cmp_lt_u32 s2, 32"); a("s_cbranch_scc1 L_svc")

    def build_masks(mb, half, tmp):
        a(f"v_and_b32 v{tmp}, 1, v0"); a(f"v_lshlrev_b32 v{tmp}, 4, v{tmp}")
        a(f"v_mov_b32 v{half}, 0xffff"); a(f"v_lshlrev_b32 v{half}, v{tmp}, v{half}")
        a(f"v_bfe_u32 v{tmp}, v0, 1, 3")
        for r in range(4):
            a(f"v_cmp_eq_u32 vcc, {r}, v{tmp}")
            a(f"v_cndmask_b32 v{mb+r}, 0, v{half}, vcc")

    def build_bq(bq, q):
        for t in range(4):
            for r in range(4):
                a(f"v_cndmask_b32 v{bq+4*t+r}, 0, v{q+r}, s[{52+2*t}:{53+2*t}]")

    def red_ops(S, D, bank):
        return [f"v_mov_b32_dpp v{S}, v{D} {ror(4*(bank-0), 1 << bank)}"] + \
               [f"v_add_f32_dpp v{S}, v{D+b}, v{S} {ror(4*(bank-b), 1 << bank)}" for b in (1, 2, 3)]

    def softmax(S, m, t, l, acc):
        if len(S) == 1:
            a(f"v_max_f32_dpp v{m}, v{S[0]}, v{S[0]} {ror(8)}")
        else:
            a(f"v_max3_f32 v{m}, v{S[0]}, v{S[1]}, v{S[2]}")
            a(f"v_max3_f32 v{m}, v{m}, v{S[3]}, v{S[4]}")
            a(f"v_mov_b32 v{acc}, 0"); a(f"v_mov_b32 v{acc+1}, 0")
            a(f"v_max_f32_dpp v{m}, v{m}, v{m} {ror(8)}")
        a(f"v_mov_b32 v{acc+2}, 0"); a(f"v_mov_b32 v{acc+3}, 0")
        a(f"v_max_f32_dpp v{m}, v{m}, v{m} {ror(4)}")
        if len(S) == 1:
            a(f"v_mov_b32 v{acc}, 0"); a(f"v_mov_b32 v{acc+1}, 0")
        a(f"v_max_f32_dpp v{m}, v{m}, v{m} {ror(2)}")
        a(f"v_max_f32_dpp v{m}, v{m}, v{m} {ror(1)}")
        for sw in ("v_permlane32_swap_b32", "v_permlane16_swap_b32"):
            a(f"v_mov_b32 v{t}, v{m}")
            a(f"{sw} v{m}, v{t}")
            a(f"v_max_f32 v{m}, v{m}, v{t}")
        a(f"v_mul_f32 v{m}, s60, v{m}")
        for s in S: a(f"v_fma_f32 v{s}, v{s}, s60, -v{m}")
        for s in S: a(f"v_exp_f32 v{s}, v{s}")
        a(f"v_mov_b32_dpp v{acc+1}, v{m} {ror(0, 0xc)}")
        if len(S) == 1:
            a(f"v_mov_b32 v{l}, v{S[0]}")
        else:
            a(f"v_add_f32 v{l}, v{S[0]}, v{S[1]}")
            for s in S[2:]: a(f"v_add_f32 v{l}, v{l}, v{s}")
        for s in S: a(f"v_cvt_pk_bf16_f32 v{s}, v{s}, v{s}")
        a(f"v_add_f32_dpp v{acc}, v{l}, v{l} {ror(8, 0xc)}")

    def spin_tail(loop, done, sl):
        a("s_add_u32 s61, s61, 1"); a(f"s_cmp_gt_u32 s61, {cfg.spin}"); a(f"s_cbranch_scc1 {done}")
        if sl: a(f"s_sleep {sl}")
        a(f"s_branch {loop}")

    BQ, DD, STG, MSK, QC = 8, 24, 36, 52, 56
    S4 = [60, 61, 62, 63, 5]
    S4P = [6, 7, 0]
    STMP = STG
    VK, VL, VLDS, VQA = 1, 2, 3, 4
    BB, ACC = 8, 16
    stamp()
    a("s_sub_u32 s36, s2, 32"); a("s_and_b32 s37, s36, 31"); a("s_lshr_b32 s38, s36, 5")
    a("s_lshl_b32 s28, s37, 21"); a(f"s_mul_i32 s39, s38, {72*4096}"); a("s_add_u32 s28, s28, s39")
    a("s_lshl_b32 s39, s3, 12"); a("s_add_u32 s28, s28, s39")
    a("s_mul_i32 s34, s3, 40960")

    def ld_half(u, kv, b, ring=None, tag=None, thr=True, count=True):
        a(f"s_add_u32 s29, s28, {b * 0x4000000 + u * 16384:#x}")
        tolds = ring is not None or u in ldsu
        if tolds:
            off = 32768 + ring * 4096 if ring is not None else (u - L0) * 8192 + kv * 4096
            a(f"s_add_u32 m0, s34, {off}")
        for t in range(4):
            if thr: a.throttle(cfg.T)
            va = f"v{VK if kv == 0 else VL}"; sr = SK if kv == 0 else SV
            tg = (tag, t) if tag is not None else (u, kv, t)
            if tolds:
                a(f"buffer_load_dwordx4 {va}, {sr}, s29 offen offset:{t*1024} {cfg.nt} lds", tag=tg, count=count)
            else:
                d = kreg(u, t) if kv == 0 else vreg(u, t)
                a(f"buffer_load_dwordx4 {d}, {va}, {sr}, s29 offen offset:{t*1024} {cfg.nt}", tag=tg, count=count)

    late = list(range(12, 18))
    order0 = []
    for u in range(12): order0 += [(u, 0), (u, 1)]
    order0 += [(u, 0) for u in late] + [(u, 1) for u in late]
    assert all(u in post for u in late) or L0 > 8
    late = [u for u in late]
    for i, (u, kv) in enumerate(order0):
        ld_half(u, kv, 0)
        if i == 1:
            a(f"v_add_u32 v{VLDS}, s34, v{VL}")
            a(f"v_lshrrev_b32 v{VQA}, 4, v0"); a(f"v_lshlrev_b32 v{VQA}, 6, v{VQA}")
            a(f"v_bfe_u32 v{STG}, v0, 2, 2"); a(f"v_lshl_add_u32 v{VQA}, v{STG}, 4, v{VQA}")
            build_masks(MSK, STG, STG + 1)
            a("s_lshl_b32 s39, s38, 2"); a("s_add_u32 s39, s39, s3"); a("s_lshl_b32 s32, s37, 5"); a("s_add_u32 s32, s32, s39")
            a("s_lshl_b32 s32, s32, 10"); a(f"s_add_u32 s32, s32, {PART:#x}")
            a("s_lshl_b32 s33, s37, 8"); a(f"s_add_u32 s33, s33, {QOFF:#x}")
            a("s_lshl_b32 s35, s37, 2")
            a("s_mov_b32 s30, 0")
        if (u, kv) == (cfg.flag_at, 1):
            a(f"buffer_load_dword v{STG}, off, {SD}, s35 sc1", tag="flag")
        if (u, kv) == (cfg.flag_at + 2, 1):
            a.wait_vm("flag")
            a("s_mov_b32 s61, 0")
            a.label("L_flag")
            a(f"v_readfirstlane_b32 s36, v{STG}")
            a("s_cmp_lg_u32 s36, 0"); a("s_cbranch_scc1 L_flag_ok")
            a(f"buffer_load_dword v{STG}, off, {SD}, s35 sc1", count=False)
            a("s_waitcnt vmcnt(0)")
            spin_tail("L_flag", "L_flag_ok", 4)
            a.label("L_flag_ok")
            a("s_add_u32 s36, s33, 16384")
            a(f"buffer_load_dwordx4 {vr(STG)}, v{VQA}, {SW}, s33 offen sc1", tag="q")
            a(f"buffer_load_dwordx4 {vr(QC)}, v{VQA}, {SW}, s36 offen sc1", tag="q")
    ld_half(0, 0, 1, ring=0, tag="r0"); ld_half(1, 0, 1, ring=1, tag="r1")
    a.wait_vm("q")
    build_bq(BQ, STG)

    a.label("L_C")
    stamp()
    nlate = 4 * len(late)
    a(f"s_waitcnt vmcnt({nlate + 8})")
    a.vm = []; a.lg = []
    a(f"v_mov_b32 v{S4[4]}, 0xff800000")

    def lds_rd(u, kv, t):
        a(f"ds_read_b128 {vr(STG+4*t)}, v{VLDS} offset:{(u-L0)*8192 + kv*4096 + t*1024}", tag=(u, kv, t))
    for t in range(4): lds_rd(ldsu[0], 0, t)
    rest = [u for u in pre if u >= XK] + post
    qk = [u for u in pre if u < XK]
    gap = max(1, len(rest) // 4)
    tail = []
    ri = 0
    for i, lu in enumerate(ldsu):
        tail.append(lu)
        k = (len(rest) - ri) // (4 - i) if i < 3 else len(rest) - ri
        tail += rest[ri:ri + k]; ri += k
    a("s_cmp_eq_u32 s30, 2"); a("s_cbranch_scc1 L_qk_skip")
    pend = []
    seq = qk + tail
    for i, u in enumerate(seq):
        if i == len(qk):
            a.skip_end("L_qk_skip", None, keep_block=True)
        D = DD + 4 * (i % 3)
        ops = pend.pop(0) if len(pend) >= 2 else []
        for t in range(4):
            if u in ldsu:
                a.wait_lg((u, 0, t)); A = vr(STG + 4 * t)
            else:
                A = kreg(u, t)
            a(f"v_mfma_f32_16x16x32_bf16 {vr(D)}, {A}, {vr(BQ+4*t)}, {'0' if t == 0 else vr(D)}")
            if u in ldsu:
                k = ldsu.index(u)
                if k < 3: lds_rd(ldsu[k + 1], 0, t)
                else: lds_rd(ldsu[0], 1, t)
            if ops: a(ops[t])
        pend.append(red_ops(S4[u >> 2], D, u & 3))
    for t in range(4):
        for p in pend: a(p[t])
    sv = a.skip_begin("s_cbranch_scc0", "L_nocopy")
    for g in range((XK + 3) // 4):
        nb = min(4, XK - 4 * g)
        a(f"v_mov_b32_dpp v{S4[g]}, v{S4P[g]} {ror(0, (1 << nb) - 1)}")
    a.skip_end("L_nocopy", sv)
    softmax(S4, DD, DD + 1, DD + 2, ACC)
    early = [u for u in regu if u not in late]
    reload_u = pre[:8]
    pv = []
    ri = 0
    for i, lu in enumerate(ldsu):
        k = (len(early) - ri) // (5 - i)
        k = max(k, 1)
        pv += early[ri:ri + k]; ri += k
        pv.append(lu)
    pv += early[ri:]
    pv = [u for u in pv if u not in late]
    blocks = [(u, t) for u in pv for t in range(4)]
    lblocks = [(u, t) for u in late for t in range(4)]

    def bbuild(k, u, t):
        for r in range(4):
            a(f"v_and_b32_dpp v{BB+4*(k&1)+r}, v{S4[u>>2]}, v{MSK+r} row_newbcast:{4*(u&3)+t} {DPPALL}")
    a("s_cmp_eq_u32 s30, 1")
    bbuild(0, *blocks[0])
    done_rl = []
    for k, (u, t) in enumerate(blocks):
        nu, nt_ = blocks[k + 1] if k + 1 < len(blocks) else lblocks[0]
        bbuild(k + 1, nu, nt_)
        if u in ldsu:
            a.wait_lg((u, 1, t)); A = vr(STG + 4 * t)
        else:
            A = vreg(u, t)
        a(f"v_mfma_f32_16x16x32_bf16 {vr(ACC)}, {A}, {vr(BB+4*(k&1))}, {vr(ACC)}")
        if u in ldsu:
            i = ldsu.index(u)
            if i < 3: lds_rd(ldsu[i + 1], 1, t)
        if t == 3 and u in reload_u:
            done_rl.append(u)
            if len(done_rl) % 2 == 0:
                lb = a.newlabel("norl")
                sv = a.skip_begin("s_cbranch_scc0", lb)
                for ru in done_rl[-2:]: ld_half(ru, 1, 1, thr=False, count=False)
                a("s_cmp_eq_u32 s30, 1")
                a.skip_end(lb, sv)
    k0 = len(blocks)
    a("s_bitcmp1_b32 s30, 0")
    sv = a.skip_begin("s_cbranch_scc1", "L_pv_nowait")
    for ver in range(2):
        if ver == 1:
            a("s_branch L_pv_done")
            a.lines.append("L_pv_nowait:"); a.hist = sv
        for i, (u, t) in enumerate(lblocks):
            k = k0 + i
            if i + 1 < len(lblocks): bbuild(k + 1, *lblocks[i + 1])
            if ver == 0: a(f"s_waitcnt vmcnt({nlate - 1 - i + 8})")
            assert u not in ldsu
            a(f"v_mfma_f32_16x16x32_bf16 {vr(ACC)}, {vreg(u, t)}, {vr(BB+4*(k&1))}, {vr(ACC)}")
    a.label("L_pv_done")
    a(f"buffer_store_dwordx4 {vr(ACC)}, v{VL}, {SW}, s32 offen sc1", count=False)
    a("s_add_u32 s32, s32, 0x100000")
    stamp()
    a("s_cmp_eq_u32 s30, 0"); a("s_cbranch_scc1 L_after0")
    a("s_cmp_eq_u32 s30, 1"); a("s_cbranch_scc1 L_after1")
    a("s_cmp_eq_u32 s30, 3"); a("s_cbranch_scc1 L_end")

    def poll_q(c, nm):
        a(f"s_add_u32 s36, s33, {c * 8192}")
        a("s_mov_b32 s61, 0")
        a.label(f"L_pq{nm}")
        a(f"buffer_load_dwordx4 {vr(STG)}, v{VQA}, {SW}, s36 offen sc1", count=False)
        a("s_waitcnt vmcnt(0)")
        a(f"v_max3_u32 v{DD}, v{STG}, v{STG+1}, v{STG+2}")
        a(f"v_max_u32 v{DD}, v{DD}, v{STG+3}")
        a(f"v_cmp_eq_u32 vcc, -1, v{DD}")
        a(f"s_cbranch_vccz L_pq{nm}_ok")
        spin_tail(f"L_pq{nm}", f"L_pq{nm}_ok", cfg.sl_q)
        a.label(f"L_pq{nm}_ok")
        a.vm = []
        build_bq(BQ, STG)

    a.vm = []
    for u in range(2, XK): ld_half(u, 0, 1, thr=False)
    a("s_mov_b32 s30, 3")
    poll_q(3, "b")
    a("s_branch L_C")

    a.label("L_after0")
    a.vm = [("r0", t) for t in range(4)] + [("r1", t) for t in range(4)]
    build_bq(BQ, QC)
    for r in range(XK):
        a.wait_vm((f"r{r}", 3))
        for t in range(4):
            a(f"ds_read_b128 {vr(STG+4*t)}, v{VLDS} offset:{32768 + (r&1)*4096 + t*1024}")
        a.wait_lg()
        ld_half(r + 2, 0, 1, ring=r & 1, tag=f"r{r+2}", thr=False)
        for t in range(4):
            a(f"v_mfma_f32_16x16x32_bf16 {vr(DD)}, {vr(STG+4*t)}, {vr(BQ+4*t)}, {'0' if t == 0 else vr(DD)}")
        for op in red_ops(S4P[r >> 2], DD, r & 3): a(op)
    stamp()
    a("s_mov_b32 s30, 1")
    poll_q(1, "a")
    a("s_branch L_C")

    a.label("L_after1")
    a.vm = ["x"] * 33
    for r in (XK, XK + 1):
        for t in range(4):
            a(f"ds_read_b128 {kreg(r, t)}, v{VLDS} offset:{32768 + (r&1)*4096 + t*1024}")
    for (u, kv) in order0:
        if kv == 0 and u < XK + 2: continue
        if kv == 1 and u in reload_u: continue
        ld_half(u, kv, 1)
    ld_half(0, 0, 1); ld_half(1, 0, 1)
    build_bq(BQ, QC)
    a.wait_lg()
    a("s_mov_b32 s30, 2")
    a("s_branch L_C")

    GA, YST, OW, FW, QW, HALF = 1, 3, 4, 5, 6, 7
    XA, CS, MK, B2, XB, G = 8, 12, 16, 20, 28, 32
    STMP = 62
    PF, PQ = 0, 4096
    OA, LA, DA = 8192, 8704, 8960
    SF, SQ_ = 9216, 9280
    QL = 10240
    UB = 16384
    a.label("L_svc")
    a.vm = []; a.lg = []
    stamp()
    srd(24, 64, 2048); srd(28, 70, 0x400000); srd(32, 72, 0x400000)
    srd(36, 76, 512 * 3584); srd(40, 78, 512 * 3584); srd(44, 80, 1792 * 1024); srd(48, 82, 2048)
    a("s_cmp_lt_u32 s2, 28")
    a(f"s_cselect_b32 s38, {512*3584:#x}, 0"); a(f"s_cselect_b32 s42, {512*3584:#x}, 0")
    T0 = G
    VKS, VRK, VXA = 52, 53, 54
    a(f"v_mov_b32 v{VKS}, v1")
    a(f"v_lshrrev_b32 v{T0}, 4, v0")
    a(f"v_and_b32 v{T0+1}, 15, v0")
    a(f"v_bfe_u32 v{T0+2}, v0, 1, 2"); a(f"v_lshlrev_b32 v{VXA}, 4, v{T0+2}")
    a(f"v_lshl_add_u32 v{VXA}, v{T0}, 6, v{VXA}")
    a("s_lshl_b32 s62, s3, 8")
    a(f"v_add_u32 v{VXA}, s62, v{VXA}")
    a(f"buffer_load_dwordx4 {vr(56)}, v{VXA}, {SX}, 0 offen", tag="x")
    a(f"buffer_load_dwordx4 {vr(60)}, v{VXA}, {SX}, 0 offen offset:1024", tag="x")
    a(f"v_bfe_u32 v{T0+2}, v0, 3, 1"); a(f"v_lshlrev_b32 v{VRK}, 3, v{T0+2}")
    a(f"v_lshl_add_u32 v{VRK}, v{T0}, 5, v{VRK}")
    a(f"v_and_b32 v{T0+3}, 7, v0"); a(f"v_lshlrev_b32 v{T0+3}, 4, v{T0+3}")
    a(f"v_lshl_add_u32 v{T0+4}, v{VRK}, 13, v{T0+3}")
    a("s_lshl_b32 s63, s3, 20"); a("s_lshl_b32 s4, s2, 8"); a("s_add_u32 s63, s63, s4")

    def rowoff(k):
        r_, tau = k >> 2, k & 3
        return 16 * (tau & 1) + 2 * r_ + (tau >> 1)
    for k in range(16):
        a(f"s_add_u32 s4, s63, {rowoff(k) * 8192}")
        for e in range(2):
            a(f"buffer_load_dwordx4 {vr((2*k+e)*4, 4, 'a')}, v{T0+4}, {SWQ}, s4 offen offset:{e*128} {cfg.wnt}", tag="wq")
    a(f"v_lshlrev_b32 v{GA}, 10, v{T0}"); a(f"v_lshl_add_u32 v{GA}, v{T0+1}, 4, v{GA}"); a(f"v_add_u32 v{GA}, s62, v{GA}")
    build_masks(MK, HALF, T0 + 5)
    for r in range(4): a(f"v_mov_b32 v{48+r}, -1")
    a("s_lshl_b32 s5, s2, 15"); a(f"s_add_u32 s5, s5, {PART:#x}")
    a("s_lshl_b32 s4, s3, 20"); a("s_add_u32 s4, s4, s5")
    for i in range(32):
        a.throttle(60)
        a(f"buffer_store_dwordx4 {vr(48)}, v2, {SW}, s4 offen offset:{(i&3)*1024} sc1", tag="clr")
        if i & 3 == 3: a("s_add_u32 s4, s4, 4096")
    a("s_lshl_b32 s6, s2, 10"); a(f"s_add_u32 s6, s6, {YOFF:#x}")
    a("s_lshl_b32 s4, s3, 16"); a("s_add_u32 s4, s4, s6")
    a.throttle(60)
    a(f"buffer_store_dwordx4 {vr(48)}, v2, {SW}, s4 offen sc1", tag="clr")
    a("s_add_u32 s4, s4, 32768")
    a.throttle(60)
    a(f"buffer_store_dwordx4 {vr(48)}, v2, {SW}, s4 offen sc1", tag="clr")
    a("s_lshl_b32 s7, s2, 8"); a(f"s_add_u32 s7, s7, {QOFF:#x}")
    a("s_or_b32 s4, s3, 1"); a("s_lshl_b32 s4, s4, 13"); a("s_add_u32 s4, s4, s7")
    a(f"v_lshlrev_b32 v{T0+5}, 2, v0")
    a.throttle(60)
    a(f"buffer_store_dword v48, v{T0+5}, {SW}, s4 offen sc1", tag="clr")
    a(f"v_lshl_add_u32 v{YST}, v{T0}, 3, v{T0+1}"); a(f"v_lshlrev_b32 v{YST}, 3, v{YST}"); a(f"v_add_u32 v{YST}, s62, v{YST}")
    a(f"v_mov_b32 v{T0+5}, {OOB:#x}")
    a(f"v_mov_b32_dpp v{YST}, v{T0+5} {ror(0, 0xc)}")
    a(f"v_and_b32 v{T0+5}, 1, v{T0}"); a(f"v_lshlrev_b32 v{T0+5}, 1, v{T0+5}"); a(f"v_lshrrev_b32 v{T0+6}, 1, v{T0}")
    a(f"v_add_u32 v{T0+5}, v{T0+5}, v{T0+6}")
    a(f"v_lshl_add_u32 v{T0+5}, v{T0+5}, 3, v{T0+1}")
    a("s_lshl_b32 s4, s3, 5"); a(f"v_add_u32 v{T0+5}, s4, v{T0+5}")
    a(f"v_and_b32 v{T0+6}, 3, v{T0+5}"); a(f"v_lshlrev_b32 v{OW}, 7, v{T0+6}")
    a(f"v_bfe_u32 v{T0+6}, v{T0+5}, 2, 4"); a(f"v_lshl_add_u32 v{OW}, v{T0+6}, 3, v{OW}")
    a(f"v_lshrrev_b32 v{T0+6}, 6, v{T0+5}"); a(f"v_lshl_add_u32 v{OW}, v{T0+6}, 2, v{OW}")
    a(f"v_add_u32 v{OW}, {OA}, v{OW}")
    a(f"v_lshlrev_b32 v{T0+5}, 2, v0"); a(f"v_add_u32 v{T0+6}, {DA}, v{T0+5}")
    a(f"v_mov_b32_dpp v{OW}, v{T0+6} {ror(0, 0xc)}")
    a(f"s_add_u32 s4, s4, {LA - 32}"); a(f"v_add_u32 v{T0+6}, s4, v{T0+5}")
    a(f"v_mov_b32_dpp v{OW}, v{T0+6} quad_perm:[0,1,2,3] row_mask:0x1 bank_mask:0xc")
    a(f"v_and_b32 v{T0+5}, 1, v{T0}")
    a(f"v_bfe_u32 v{T0+6}, v0, 2, 2")
    a(f"v_and_b32 v{T0+7}, 1, v0")
    a(f"v_lshrrev_b32 v{T0+8}, 5, v0"); a(f"v_lshlrev_b32 v{T0+8}, 2, v{T0+8}")
    a("s_lshr_b32 s4, s3, 1"); a("s_lshl_b32 s4, s4, 10"); a("s_and_b32 s61, s3, 1"); a("s_lshl_b32 s61, s61, 3"); a("s_add_u32 s4, s4, s61")
    a(f"v_add_u32 v{T0+8}, s4, v{T0+8}")
    a(f"v_lshl_add_u32 v{FW}, v{T0+5}, 9, v{T0+8}"); a(f"v_lshl_add_u32 v{FW}, v{T0+6}, 5, v{FW}"); a(f"v_lshl_add_u32 v{FW}, v{T0+7}, 4, v{FW}")
    a(f"v_lshl_add_u32 v{QW}, v{T0+5}, 8, v{T0+8}"); a(f"v_lshl_add_u32 v{QW}, v{T0+6}, 4, v{QW}"); a(f"v_lshl_add_u32 v{QW}, v{T0+7}, 11, v{QW}")
    a(f"v_add_u32 v{QW}, {PQ}, v{QW}")

    a("s_lshl_b32 s63, s2, 21"); a("s_lshl_b32 s4, s3, 13"); a("s_add_u32 s63, s63, s4"); a(f"s_add_u32 s63, s63, {504*4096}")
    a("s_lshl_b32 s4, s3, 14"); a(f"s_add_u32 s88, s4, {UB}")

    def svc_units(b):
        for u in range(2):
            a(f"s_add_u32 s4, s63, {b * 0x4000000 + u * 4096:#x}")
            for kv in range(2):
                a(f"s_add_u32 m0, s88, {b * 65536 + u * 8192 + kv * 4096}")
                for t in range(4):
                    a.throttle(cfg.ST)
                    a(f"buffer_load_dwordx4 v{VKS if kv == 0 else 2}, {SK if kv == 0 else SV}, s4 offen offset:{t*1024} {cfg.nt} lds", tag="un")
    svc_units(0)

    XS = G + 8
    D0, D1 = G, G + 4
    ST1, ST2, STT = G + 12, G + 13, G + 14
    VALID = 0xCCCCCCCC33333333

    def zero_b2_delta(tmp):
        for r in range(8): a(f"v_mov_b32 v{B2+r}, 0")
        a(f"v_and_b32 v{tmp}, 2, v0"); a(f"v_lshlrev_b32 v{tmp}, 3, v{tmp}")
        a(f"v_mov_b32 v{tmp+1}, 0x3f80"); a(f"v_lshlrev_b32 v{tmp}, v{tmp}, v{tmp+1}")
        for r in range(4): a(f"v_mov_b32_dpp v{B2+4+r}, v{tmp} {ror(0, 1 << r)}")

    def xpost(X):
        for r in range(4): a(f"v_cvt_pk_bf16_f32 v{X+r}, v{X+r}, v{X+r}")
        for r in range(4): a(f"v_and_b32 v{XS+r}, v{X+r}, v{HALF}")
        for r in range(4): a(f"v_and_b32 v{X+r}, 0xffff0000, v{X+r}")
        a(f"v_add_f32 v{ST1}, v{X}, v{X+1}"); a(f"v_add_f32 v{ST2}, v{X+2}, v{X+3}"); a(f"v_add_f32 v{ST1}, v{ST1}, v{ST2}")

    def gemv2(wf, wb, waddr, rstride, estride, parea, sarea, X, const_b=False):
        st = []
        if not const_b:
            st = [f"v_mul_f32 v{ST2}, v{X}, v{X}"] + [f"v_fmac_f32 v{ST2}, v{X+r}, v{X+r}" for r in (1, 2, 3)]
            st += [f"v_cndmask_b32 v{ST1}, v{ST1}, v{ST2}, s[96:97]"]
            st += [f"v_add_f32_dpp v{ST1}, v{ST1}, v{ST1} {ror(k)}" for k in (2, 4, 8)]
            for sw in ("v_permlane32_swap_b32", "v_permlane16_swap_b32"):
                st += [f"v_mov_b32 v{STT}, v{ST1}", f"{sw} v{ST1}, v{STT}", f"v_add_f32 v{ST1}, v{ST1}, v{STT}"]

        def bb(k):
            r_, tau = k >> 2, k & 3
            for r in range(4):
                a(f"v_mov_b32_dpp v{B2+4*(k&1)+r}, v{XS+r_} {ror(4*(r-tau), 1 << r)}")
        bb(0)
        for k in range(16):
            if k < 15 and not const_b: bb(k + 1)
            B = vr(B2 + (0 if const_b else 4 * (k & 1)))
            for e, D in ((0, D0), (1, D1)):
                a(f"v_mfma_f32_16x16x32_bf16 {vr(D)}, {vr(wb+(2*k+e)*4, 4, wf)}, {B}, {'0' if k == 0 else vr(D)}")
            if st: a(st.pop(0))
        if not const_b:
            a(f"v_lshlrev_b32 v{STT}, 2, v0"); a(f"s_lshl_b32 s4, s3, 3"); a(f"v_add_u32 v{STT}, s4, v{STT}")
            a("s_mov_b64 exec, 3")
            a(f"ds_write_b32 v{STT}, v{ST1} offset:{sarea}")
        a(f"s_mov_b32 exec_lo, {VALID & 0xffffffff:#x}"); a(f"s_mov_b32 exec_hi, {VALID >> 32:#x}")
        for e, D in ((0, D0), (1, D1)):
            for r in range(4):
                a(f"ds_write_b32 v{waddr}, v{D+r} offset:{e*estride + r*rstride}")
        a("s_mov_b64 exec, -1")
        a(f"v_mov_b32 v{STT}, 0")
        a.wait_lg(); a("s_barrier")
        if not const_b:
            a(f"ds_read_b128 {vr(G)}, v{STT} offset:{sarea}", tag="st")
            a(f"ds_read_b128 {vr(G+4)}, v{STT} offset:{sarea+16}", tag="st")
        for q in range(4):
            a(f"ds_read_b128 {vr(G+16+4*q)}, v2 offset:{parea + q*1024}", tag=("p", q))
        if not const_b:
            a.wait_lg("st")
            a(f"v_add_f32 v{G}, v{G}, v{G+2}"); a(f"v_add_f32 v{G+1}, v{G+1}, v{G+3}")
            a(f"v_add_f32 v{G+4}, v{G+4}, v{G+6}"); a(f"v_add_f32 v{G+5}, v{G+5}, v{G+7}")
            a(f"v_add_f32 v{G}, v{G}, v{G+4}"); a(f"v_add_f32 v{G+1}, v{G+1}, v{G+5}")
            a(f"v_mul_f32 v{G}, {f2u(1/512):#x}, v{G}")
            a(f"v_mul_f32 v{G+1}, {f2u(1/512):#x}, v{G+1}")
            a(f"v_fma_f32 v{G+1}, -v{G}, v{G}, v{G+1}")
            a(f"v_add_f32 v{G+1}, {f2u(1e-5):#x}, v{G+1}")
            a(f"v_rsq_f32 v{G+1}, v{G+1}")
        for h in range(2):
            b = G + 16 + 8 * h
            a.wait_lg(("p", 2 * h + 1))
            for i in range(4): a(f"v_add_f32 v{b+i}, v{b+i}, v{b+i+4}")
            a(f"v_add_f32 v{b}, v{b}, v{b+1}"); a(f"v_add_f32 v{b+2}, v{b+2}, v{b+3}"); a(f"v_add_f32 v{b}, v{b}, v{b+2}")

    def fold(cs):
        for h in range(2):
            a(f"v_fma_f32 v{G+16+8*h}, -v{G}, v{cs+h}, v{G+16+8*h}")
        for h in range(2):
            a(f"v_mul_f32 v{G+16+8*h}, v{G+1}, v{G+16+8*h}")

    def colsum(wf, wb, waddr, rs, es, parea, cs):
        for r in range(8): a(f"v_mov_b32 v{B2+r}, 0")
        a(f"v_and_b32 v{XS}, 0x3f803f80, v{HALF}")
        gemv2(wf, wb, waddr, rs, es, parea, 0, 0, const_b=True)
        a(f"v_mov_b32 v{cs}, v{G+16}"); a(f"v_mov_b32 v{cs+1}, v{G+24}")

    def x_from_raw(raw):
        a(f"v_and_b32 v{G+15}, 8, v0"); a(f"v_lshlrev_b32 v{G+15}, 1, v{G+15}"); a(f"v_sub_u32 v{G+15}, 16, v{G+15}")
        for r in range(4):
            a(f"v_lshlrev_b32 v{XA+r}, v{G+15}, v{raw+r}"); a(f"v_and_b32 v{XA+r}, 0xffff0000, v{XA+r}")

    a("s_mov_b32 s96, 0xaaaaaaaa"); a("s_mov_b32 s97, 0xaaaaaaaa")
    VGU, VWD = XB, XB + 1
    a("s_movk_i32 s4, 3584")
    a(f"v_mul_lo_u32 v{VGU}, s4, v{VRK}"); a(f"v_add_u32 v{VGU}, v{VGU}, v{T0+3}")
    a(f"v_lshlrev_b32 v{VWD}, 14, v{T0}"); a(f"v_lshl_add_u32 v{VWD}, v{T0+1}, 4, v{VWD}"); a(f"v_add_u32 v{VWD}, s62, v{VWD}")
    a(f"v_mov_b32 v{XB+2}, v{VKS}")
    VKS = XB + 2
    a.wait_vm("wq")
    for r in range(4): a(f"v_mov_b32 v{252+r}, v{56+r}")
    x_from_raw(60)
    colsum("a", 0, QW, 64, 512, PQ, CS + 2)
    a("s_barrier")
    xpost(XA)
    a("s_mov_b32 s89, 2"); a("s_mov_b32 s98, 0")
    saved_vm = list(a.vm)
    a("s_branch L_QG")
    a.label("L_qret0")
    a("s_barrier")
    x_from_raw(252)
    xpost(XA)
    a("s_mov_b32 s89, 0"); a("s_mov_b32 s98, 1")
    a("s_branch L_QG")
    a.label("L_qret1")
    a.vm = saved_vm + ["qst"]
    a("s_lshl_b32 s4, s2, 17")
    for t in range(32):
        a.throttle(cfg.ST)
        a(f"buffer_load_dwordx4 {vr(128+4*t, 4, 'a')}, v{GA}, {SWO}, s4 offen {cfg.wnt}", tag="wo")
        a("s_add_u32 s4, s4, 4096")
        if t == 23:
            a.wait_vm("qst")
            a("s_barrier")
            a("s_cmp_lg_u32 s3, 0")
            sv = a.skip_begin("s_cbranch_scc1", "L_noflag")
            a(f"v_mov_b32 v{G}, 1"); a("s_lshl_b32 s61, s2, 2")
            a("s_mov_b64 exec, 1")
            a(f"buffer_store_dword v{G}, off, {SD}, s61 sc1", count=False)
            a("s_mov_b64 exec, -1")
            a.skip_end("L_noflag", sv)
            stamp()
    a(f"s_mul_i32 s61, s3, {128*3584}"); a("s_lshl_b32 s4, s2, 7"); a("s_add_u32 s61, s61, s4")
    for k in range(16):
        a(f"s_add_u32 s4, s61, {rowoff(k) * 3584}")
        for e in range(2):
            a.throttle(cfg.ST)
            a(f"buffer_load_dwordx4 {vr(64+(2*k+e)*4)}, v{VGU}, {SWG if e == 0 else SWU}, s4 offen {cfg.wnt}", tag="wg")
    a("s_lshl_b32 s4, s2, 16")
    for t in range(16):
        a.throttle(cfg.ST)
        a(f"buffer_load_dwordx4 {vr(192+4*t)}, v{VWD}, {SWD}, s4 offen offset:{(t&3)*1024} {cfg.wnt}", tag="wd")
        if t & 3 == 3: a("s_add_u32 s4, s4, 4096")
    svc_units(1)
    a("s_mov_b32 s89, 0"); a("s_mov_b32 s98, 0")
    saved_vm = list(a.vm)
    a("s_branch L_A")
    a.label("L_aret0")
    a.vm = saved_vm
    a.wait_vm("wg")
    colsum("v", 64, FW, 128, 2048, PF, CS)
    a.wait_vm()
    stamp()
    a("s_mov_b32 s89, 2"); a("s_mov_b32 s98, 1")
    a("s_branch L_A")
    a.label("L_aret1")
    a(f"v_and_b32 v{G}, 31, v0"); a(f"v_lshlrev_b32 v{G}, 2, v{G}")
    a("s_mov_b32 s61, 0")
    a.label("L_flags")
    a(f"buffer_load_dword v{G+1}, v{G}, {SD}, 0 offen sc1", count=False)
    a("s_waitcnt vmcnt(0)")
    a(f"v_cmp_eq_u32 vcc, 0, v{G+1}")
    a("s_cbranch_vccz L_flags_ok")
    spin_tail("L_flags", "L_flags_ok", 4)
    a.label("L_flags_ok")
    a("s_mov_b32 s99, 0")
    a(f"s_mov_b32 s93, {YOFF:#x}")

    a.label("L_chain")
    a.vm = []; a.lg = []
    AC = XB
    a("s_mov_b32 s61, 0")
    a.label("L_rp")
    for q in range(8):
        if q: a(f"s_add_u32 s4, s5, {q*4096}")
        a(f"buffer_load_dwordx4 {vr(G+4*q)}, v{GA}, {SW}, {'s4' if q else 's5'} offen sc1", count=False)
    a("s_waitcnt vmcnt(0)")
    M, TT = AC, AC + 1
    m = lambda q: G + 4 * q + 1
    a(f"v_max3_f32 v{M}, v{m(0)}, v{m(1)}, v{m(2)}"); a(f"v_max3_f32 v{TT}, v{m(3)}, v{m(4)}, v{m(5)}")
    a(f"v_max3_f32 v{M}, v{M}, v{m(6)}, v{m(7)}"); a(f"v_max_f32 v{M}, v{M}, v{TT}")
    for sw in ("v_permlane32_swap_b32", "v_permlane16_swap_b32"):
        a(f"v_mov_b32 v{TT}, v{M}"); a(f"{sw} v{M}, v{TT}"); a(f"v_max_f32 v{M}, v{M}, v{TT}")
    for q in range(8): a(f"v_sub_f32 v{B2+q}, v{m(q)}, v{M}")
    for q in range(8): a(f"v_exp_f32 v{B2+q}, v{B2+q}")
    for q in range(8):
        for r in range(4):
            op = "v_mul_f32_dpp" if q == 0 else "v_fmac_f32_dpp"
            a(f"{op} v{AC+r}, v{B2+q}, v{G+4*q+r} row_newbcast:8 {DPPALL}")
    a(f"v_permlane32_swap_b32 v{AC}, v{AC+1}"); a(f"v_permlane32_swap_b32 v{AC+2}, v{AC+3}")
    a(f"v_add_f32 v{AC}, v{AC}, v{AC+1}"); a(f"v_add_f32 v{AC+2}, v{AC+2}, v{AC+3}")
    a(f"v_permlane16_swap_b32 v{AC}, v{AC+2}")
    a(f"v_add_f32 v{AC}, v{AC}, v{AC+2}")
    a(f"v_cmp_u_f32 vcc, v{AC}, v{AC}")
    a(f"v_cvt_pk_bf16_f32 v{AC+1}, v{AC}, v{AC}")
    a("s_cbranch_vccz L_rp_ok")
    spin_tail("L_rp", "L_rp_ok", cfg.sl_r)
    a.label("L_rp_ok")
    a(f"v_mov_b32_dpp v{AC}, v{AC+1} {ror(0, 0x3)}")
    a(f"ds_write_b32 v{OW}, v{AC}")
    SRC, LQ, BW = G + 8, G + 12, G
    a(f"v_lshrrev_b32 v{G+16}, 1, v2"); a(f"v_and_b32 v{G+17}, 0x70, v2")
    stamp()
    a.wait_lg(); a("s_barrier")
    a(f"ds_read_b64 {vr(SRC, 2)}, v{G+16} offset:{OA}", tag="o")
    a(f"ds_read_b128 {vr(LQ)}, v{G+17} offset:{LA}", tag="l")

    def gemv1(n, src_of, wf, wb, acc, extra):
        def bb(t):
            s, ln = src_of(t)
            for r in range(4):
                a(f"v_and_b32_dpp v{BW+4*(t&1)+r}, v{s}, v{MK+r} row_newbcast:{ln} {DPPALL}")
        bb(0)
        for t in range(n):
            if t + 1 < n: bb(t + 1)
            a(f"v_mfma_f32_16x16x32_bf16 {vr(acc)}, {vr(wb+4*t, 4, wf)}, {vr(BW+4*(t&1))}, {'0' if t == 0 else vr(acc)}")
            if extra and t >= 2: a(extra.pop(0))
    a.wait_lg("o")
    ex = ["s_waitcnt lgkmcnt(0)", f"v_add_f32 v{LQ}, v{LQ}, v{LQ+1}", f"v_add_f32 v{LQ+2}, v{LQ+2}, v{LQ+3}", f"v_add_f32 v{LQ}, v{LQ}, v{LQ+2}"]
    ex += [f"v_add_f32_dpp v{LQ}, v{LQ}, v{LQ} {ror(k)}" for k in (4, 2, 1)] + [f"v_rcp_f32 v{LQ}, v{LQ}"]
    gemv1(32, lambda t: (SRC + (t >> 4), t & 15), "a", 128, AC, ex)
    a.lg = []
    for r in range(4): a(f"v_mul_f32 v{AC+r}, v{AC+r}, v{LQ}")
    a(f"v_cvt_pk_bf16_f32 v{G+16}, v{AC}, v{AC+1}"); a(f"v_cvt_pk_bf16_f32 v{G+17}, v{AC+2}, v{AC+3}")
    a(f"buffer_store_dwordx2 {vr(G+16, 2)}, v{YST}, {SW}, s6 offen sc1", count=False)
    a("s_add_u32 s6, s6, 32768")
    stamp()

    def ygather(nq, C, D, nm):
        zero_b2_delta(G + 20)
        if cfg.pre_y: a(f"s_sleep {cfg.pre_y}")
        a("s_mov_b32 s61, 0")
        a.label(f"L_y{nm}")
        a.vm = []
        for q in range(nq):
            if q: a(f"s_add_u32 s4, s93, {q*4096}")
            a(f"buffer_load_dwordx4 {vr(G+4*q)}, v{GA}, {SW}, {'s4' if q else 's93'} offen sc1", tag=q)
        for q in range(nq):
            a.wait_vm(q)
            a(f"v_mfma_f32_16x16x32_bf16 {vr(D)}, {vr(G+4*q)}, {vr(B2+4)}, {vr(C) if q == 0 else vr(D)}")
        xpost(D)
        a(f"v_cmp_u_f32 vcc, v{ST1}, v{ST1}")
        a(f"s_cbranch_vccz L_y{nm}_ok")
        spin_tail(f"L_y{nm}", f"L_y{nm}_ok", cfg.sl_y)
        a.label(f"L_y{nm}_ok")
        a("s_add_u32 s93, s93, 32768")
        stamp()
    ygather(8, XA, XB, "1")
    gemv2("v", 64, FW, 128, 2048, PF, SF, XB)
    fold(CS)
    g_, u_ = G + 16, G + 24
    c0 = -2 * math.log2(math.e) * math.sqrt(2 / math.pi)
    a(f"v_mul_f32 v{G+17}, v{g_}, v{g_}")
    a(f"v_mov_b32 v{G+18}, {f2u(c0):#x}")
    a(f"v_fmac_f32 v{G+18}, {f2u(c0 * 0.044715):#x}, v{G+17}")
    a(f"v_mul_f32 v{G+18}, v{G+18}, v{g_}")
    a(f"v_exp_f32 v{G+18}, v{G+18}")
    a(f"v_mul_f32 v{g_}, v{g_}, v{u_}")
    a(f"v_add_f32 v{G+18}, 1.0, v{G+18}")
    a(f"v_rcp_f32 v{G+18}, v{G+18}")
    a(f"v_mul_f32 v{g_}, v{g_}, v{G+18}")
    a(f"v_cvt_pk_bf16_f32 v{g_}, v{g_}, v{g_}")
    AD = G + 8
    gemv1(16, lambda t: (g_, t), "v", 192, AD, [])
    a(f"v_cvt_pk_bf16_f32 v{G+16}, v{AD}, v{AD+1}"); a(f"v_cvt_pk_bf16_f32 v{G+17}, v{AD+2}, v{AD+3}")
    a(f"buffer_store_dwordx2 {vr(G+16, 2)}, v{YST}, {SW}, s6 offen sc1", count=False)
    a("s_add_u32 s6, s6, 32768")
    a("s_add_u32 s5, s5, 0x100000")
    stamp()
    a("s_and_b32 s4, s99, 1"); a("s_min_u32 s61, s2, 1"); a("s_and_b32 s4, s4, s61")
    a("s_cbranch_scc0 L_doy2")
    a("s_add_u32 s93, s93, 32768")
    a("s_branch L_next_batch")
    a.label("L_doy2")
    ygather(7, XB, XA, "2")
    a("s_bitcmp1_b32 s99, 0"); a("s_cbranch_scc1 L_out")
    a("s_add_u32 s89, s99, 1"); a("s_mov_b32 s98, 2")

    a.label("L_QG")
    a.lg = []
    gemv2("a", 0, QW, 64, 512, PQ, SQ_, XA)
    fold(CS + 2)
    a(f"v_cvt_pk_bf16_f32 v{G+16}, v{G+16}, v{G+24}")
    a(f"v_lshlrev_b32 v{G+17}, 2, v0")
    a("s_lshl_b32 s4, s89, 13"); a("s_add_u32 s4, s4, s7")
    a("s_cmp_lg_u32 s3, 0")
    sv = a.skip_begin("s_cbranch_scc1", "L_noq")
    a(f"buffer_store_dword v{G+16}, v{G+17}, {SW}, s4 offen sc1", count=False)
    a.skip_end("L_noq", sv)
    a("s_lshr_b32 s4, s89, 1"); a("s_lshl_b32 s4, s4, 10"); a("s_add_u32 s4, s4, s62")
    a(f"v_add_u32 v{G+17}, s4, v{G+17}")
    a(f"ds_write_b32 v{G+17}, v{G+16} offset:{QL}")
    stamp()
    a.wait_lg()
    a("s_cmp_eq_u32 s98, 0"); a("s_cbranch_scc1 L_qret0")
    a("s_cmp_eq_u32 s98, 1"); a("s_cbranch_scc1 L_qret1")

    a.label("L_A")
    a.lg = []
    ABQ, AST, ADD = G, G + 16, B2
    AS, AU = XB, XB + 3
    a("s_lshr_b32 s4, s89, 1"); a("s_lshl_b32 s61, s4, 16"); a("s_add_u32 s61, s61, s88")
    a("s_lshl_b32 s4, s4, 10"); a("s_add_u32 s4, s4, s62")
    a(f"v_lshrrev_b32 v{AU}, 4, v0"); a(f"v_lshlrev_b32 v{AU}, 6, v{AU}")
    a(f"v_bfe_u32 v{AS}, v0, 2, 2"); a(f"v_lshl_add_u32 v{AU}, v{AS}, 4, v{AU}"); a(f"v_add_u32 v{AU}, s4, v{AU}")
    a(f"ds_read_b128 {vr(ADD)}, v{AU} offset:{QL}")
    a(f"v_add_u32 v{AU}, s61, v2")
    a(f"v_mov_b32 v{AS}, 0xff800000")
    a.wait_lg()
    build_bq(ABQ, ADD)
    for u in range(2):
        for t in range(4): a(f"ds_read_b128 {vr(AST+4*t)}, v{AU} offset:{u*8192 + t*1024}", tag=t)
        for t in range(4):
            a.wait_lg(t)
            a(f"v_mfma_f32_16x16x32_bf16 {vr(ADD+4*u)}, {vr(AST+4*t)}, {vr(ABQ+4*t)}, {'0' if t == 0 else vr(ADD+4*u)}")
    for u in range(2):
        for op in red_ops(AS, ADD + 4 * u, u): a(op)
    AB, AAC = G, G + 8
    softmax([AS], XB + 1, XB + 2, G + 12, AAC)
    for u in range(2):
        for t in range(4): a(f"ds_read_b128 {vr(AST+4*t)}, v{AU} offset:{u*8192 + 4096 + t*1024}", tag=t)
        for t in range(4):
            for r in range(4):
                a(f"v_and_b32_dpp v{AB+4*(t&1)+r}, v{AS}, v{MK+r} row_newbcast:{4*u+t} {DPPALL}")
            a.wait_lg(t)
            a(f"v_mfma_f32_16x16x32_bf16 {vr(AAC)}, {vr(AST+4*t)}, {vr(AB+4*(t&1))}, {vr(AAC)}")
    a("s_lshl_b32 s4, s89, 20"); a("s_lshl_b32 s61, s2, 15"); a("s_add_u32 s4, s4, s61")
    a("s_lshl_b32 s61, s3, 10"); a("s_add_u32 s4, s4, s61"); a(f"s_add_u32 s4, s4, {PART + 28*1024:#x}")
    a(f"buffer_store_dwordx4 {vr(AAC)}, v2, {SW}, s4 offen sc1", count=False)
    a("s_cmp_eq_u32 s98, 0"); a("s_cbranch_scc1 L_aret0")
    a("s_cmp_eq_u32 s98, 1"); a("s_cbranch_scc1 L_aret1")
    a("s_add_u32 s99, s99, 1")
    a("s_branch L_chain")

    a.label("L_out")
    for r in range(4):
        a(f"v_or_b32_dpp v{G+r}, v{XA+r}, v{XS+r} {ror(8)}")
    a(f"v_bfe_u32 v{G+4}, v0, 1, 2"); a(f"v_lshlrev_b32 v{G+4}, 4, v{G+4}")
    a(f"v_lshrrev_b32 v{G+5}, 4, v0"); a(f"v_lshl_add_u32 v{G+4}, v{G+5}, 6, v{G+4}")
    a("s_lshr_b32 s4, s99, 1"); a("s_lshl_b32 s4, s4, 10"); a("s_add_u32 s4, s4, s62")
    a("s_mov_b32 exec_lo, 0x00550055"); a("s_mov_b32 exec_hi, 0x00550055")
    a(f"buffer_store_dwordx4 {vr(G)}, v{G+4}, {SO}, s4 offen", count=False)
    a("s_mov_b64 exec, -1")
    stamp()
    a.label("L_next_batch")
    a("s_cmp_eq_u32 s99, 3"); a("s_cbranch_scc1 L_end")
    a(f"v_bfe_u32 v{G+8}, v0, 1, 2"); a(f"v_lshlrev_b32 v{G+8}, 4, v{G+8}")
    a(f"v_lshrrev_b32 v{G+9}, 4, v0"); a(f"v_lshl_add_u32 v{G+8}, v{G+9}, 6, v{G+8}")
    a(f"buffer_load_dwordx4 {vr(G+16)}, v{G+8}, {SX}, s62 offen offset:1024", count=False)
    a("s_waitcnt vmcnt(0)")
    x_from_raw(G + 16)
    a("s_mov_b32 s99, 2")
    a("s_branch L_chain")

    a.label("L_end")
    a("s_endpgm")
    a.raw('.section .rodata,"a"'); a.raw(".p2align 6"); a.raw(f".amdhsa_kernel {KN}")
    for l in ["next_free_vgpr 512", "next_free_sgpr 102", "accum_offset 256", "group_segment_fixed_size 0", "kernarg_size 96",
              "user_sgpr_count 2", "user_sgpr_kernarg_segment_ptr 1", "system_sgpr_workgroup_id_x 1"]:
        a.raw("  .amdhsa_" + l)
    a.raw(".end_amdhsa_kernel")
    open(path, "w").write(a.text())
    return a


if __name__ == "__main__":
    from build import build
    import os
    cfg = Cfg()
    out = "k.s"
    for arg in sys.argv[1:]:
        if "=" in arg:
            k, v = arg.split("=")
            cur = getattr(Cfg, k)
            setattr(cfg, k, v if isinstance(cur, str) else bool(int(v)) if isinstance(cur, bool) else int(v))
        else:
            out = arg
    a = gen(cfg, out)
    co = build(out)
    print(out, "lines", len(a.lines), "nops", a.nnop, "co bytes", os.path.getsize(co))
    os.remove(co); os.remove(out[:-2] + ".harness.s")
```
